```python
import torch

def _softmax(x, axis=-1):
    return torch.softmax(x, dim=axis)
def _gelu(x):
    return torch.nn.functional.gelu(x, approximate="tanh")
def _silu(x):
    return torch.nn.functional.silu(x)
def _sigmoid(x):
    return torch.sigmoid(x)
def _layernorm(x, axis=-1, eps=1e-5):
    m = x.mean(dim=axis, keepdim=True)
    v = x.var(dim=axis, keepdim=True, unbiased=False)
    return (x - m) / torch.sqrt(v + eps)
def _scatter_add(tgt, idx, src, axis=0):
    return tgt.clone().index_add_(axis, idx, src)
def _segment_sum(src, seg, n):
    out = torch.zeros((n,) + src.shape[1:], dtype=src.dtype)
    return out.index_add_(0, seg, src)
def _pad(x, pw):
    flat = tuple(v for pair in reversed(pw) for v in pair)
    return torch.nn.functional.pad(x, flat)

kernel_name = 'sequential_preLN__spectral_gfnet__dense_activation_silu__prompt'

def setup_inputs():

    _w = (lambda a: (lambda t: t.to(torch.bfloat16) if t.is_floating_point() else t)(torch.as_tensor(a)))
    def _A_setup():
        B, S, D = 1, 2048, 512
        Df = D // 2 + 1
        return {
            "x": _w((lambda *s: torch.randn(*s, dtype=torch.bfloat16) * 0.05)(B, S, D)),
            "w_r": _w((lambda *s: torch.randn(*s, dtype=torch.bfloat16) * 0.4)(S, Df) * 0.02),
            "w_i": _w((lambda *s: torch.randn(*s, dtype=torch.bfloat16) * 0.4)(S, Df) * 0.02),
        }
    _A_in = _A_setup()

    def _B_setup():
        B, S, D, F = 1, 2048, 512, 1792
        return {
            "x": _w((lambda *s: torch.randn(*s, dtype=torch.bfloat16) * 0.05)(B, S, D)),
            "w1": _w((lambda *s: torch.randn(*s, dtype=torch.bfloat16) * 0.8)(D, F) * (D ** -0.5)),
            "w2": _w((lambda *s: torch.randn(*s, dtype=torch.bfloat16) * 0.1)(F, D) * (F ** -0.5)),
        }
    _B_in = _B_setup()

    return {
        "A_x": _A_in["x"],
        "A_w_r": _A_in["w_r"],
        "A_w_i": _A_in["w_i"],
        "B_x": _B_in["x"],
        "B_w1": _B_in["w1"],
        "B_w2": _B_in["w2"],
    }

def reference(A_x, A_w_r, A_w_i, B_x, B_w1, B_w2):
    def _A_ref(x, w_r, w_i):
        B, S, D = x.shape
        X = (lambda x, axes=(-2,-1): torch.fft.rfft2(x.float(), dim=axes))(x, axes=(-2, -1))
        W = w_r + 1j * w_i
        X = X * W
        y = (lambda x, s, axes=(-2,-1): torch.fft.irfft2(x, s=s, dim=axes).to(torch.bfloat16))(X, (S, D), axes=(-2, -1))
        return y

    def _B_ref(x, w1, w2):
        h = torch.einsum("bsd,df->bsf", x, w1)
        h = _silu(h)
        out = torch.einsum("bsf,fd->bsd", h, w2)
        return out

    x = A_x
    h = x + _A_ref(_layernorm(x, axis=-1), A_w_r, A_w_i)
    h2 = h + _B_ref(_layernorm(h, axis=-1), B_w1, B_w2)
    return h2
```

```python
import re

REG_RE = re.compile(r'^(-|\|)?(abs\()?([vas])(?:(\d+)|\[(\d+):(\d+)\])\)?\|?$')

def regs_of(op):
    op = op.strip()
    if op in ('vcc',): return [('s', 'vcc')]
    if op in ('vcc_lo', 'vcc_hi'): return [('s', 'vcc')]
    if op == 'exec': return [('s', 'exec')]
    if op == 'm0': return [('s', 'm0')]
    m = REG_RE.match(op)
    if not m: return []
    k = m.group(3)
    if m.group(4) is not None:
        return [(k, int(m.group(4)))]
    return [(k, i) for i in range(int(m.group(5)), int(m.group(6)) + 1)]

TRANS = ('v_exp_f32', 'v_log_f32', 'v_rcp_f32', 'v_rsq_f32', 'v_sqrt_f32', 'v_sin_f32', 'v_cos_f32')
NODST_S = ('s_cmp', 's_waitcnt', 's_barrier', 's_branch', 's_nop', 's_cbranch', 's_setprio', 's_endpgm', 's_sleep', 's_bitcmp')

def v(i, n=1):
    return f"v{i}" if n == 1 else f"v[{i}:{i+n-1}]"
def a(i, n=1):
    return f"a{i}" if n == 1 else f"a[{i}:{i+n-1}]"
def s(i, n=1):
    return f"s{i}" if n == 1 else f"s[{i}:{i+n-1}]"

class Ins:
    __slots__ = ('mn', 'ops', 'mods', 'dst', 'src', 'kind', 'passes', 'srcC', 'text')

def mfma_passes(mn):
    if '32x32x16' in mn: return 8
    if '16x16x32' in mn: return 4
    if '16x16x16' in mn: return 4
    raise ValueError(mn)

class Asm:
    def __init__(self):
        self.out = []
        self.reset_state()
        self.nnop = 0
        self.maxv = -1; self.maxa = -1; self.maxs = -1
    def reset_state(self):
        self.hist = []
        self.vm = []
        self.lg = []
        self.lg_smem = False
    def raw(self, text):
        self.out.append(text)
    def comment(self, t):
        self.out.append("    ; " + t)
    def label(self, name, keep=False):
        self.out.append(f"{name}:")
        if not keep:
            self.flush_hazards()
    def flush_hazards(self):
        need = 0
        dist = 0
        for ins, st in reversed(self.hist):
            if ins.kind == 'mfma':
                need = max(need, (12 if ins.passes == 8 else 8) - dist)
            elif ins.kind in ('valu', 'trans'):
                need = max(need, 5 - dist)
            elif ins.kind == 'salu' or ins.kind == 'store':
                need = max(need, 2 - dist)
            dist += st
            if dist > 20: break
        if need > 0: self._nop(need)
        self.hist = []
    def _nop(self, n):
        while n > 0:
            k = min(n, 16)
            self.out.append(f"    s_nop {k-1}")
            i = Ins(); i.mn = 's_nop'; i.kind = 'nop'; i.dst = []; i.src = []; i.passes = 0; i.srcC = []; i.mods = ''; i.ops = []
            self.hist.append((i, k)); self.nnop += 1
            n -= k
    def parse(self, text):
        t = text.split(';')[0].strip()
        parts = t.split(None, 1)
        mn = parts[0]
        rest = parts[1] if len(parts) > 1 else ''
        ops = []; cur = ''; depth = 0
        for ch in rest:
            if ch in '[(': depth += 1
            if ch in '])': depth -= 1
            if ch == ',' and depth == 0:
                ops.append(cur.strip()); cur = ''
            else: cur += ch
        if cur.strip(): ops.append(cur.strip())
        mods = ''
        if ops:
            last = ops[-1].split(None, 1)
            if len(last) > 1 and not mn.startswith('s_waitcnt'):
                ops[-1] = last[0]; mods = last[1]
        i = Ins(); i.mn = mn; i.ops = ops; i.mods = mods; i.text = text; i.passes = 0; i.srcC = []
        base = re.sub(r'_(e32|e64|dpp|sdwa)$', '', mn)
        R = [regs_of(o) for o in ops]
        dst = []; src = []
        if mn.startswith('v_mfma'):
            i.kind = 'mfma'; i.passes = mfma_passes(mn)
            dst = R[0]; src = R[1] + R[2] + R[3]; i.srcC = R[3]
        elif mn.startswith('v_'):
            i.kind = 'trans' if base in TRANS else 'valu'
            if base.startswith('v_cmp'):
                dst = R[0]; src = sum(R[1:], [])
            elif base in ('v_add_co_u32', 'v_sub_co_u32', 'v_addc_co_u32', 'v_subb_co_u32', 'v_mad_u64_u32', 'v_div_scale_f32'):
                dst = R[0] + R[1]; src = sum(R[2:], [])
            elif base.startswith('v_permlane') and 'swap' in base:
                dst = R[0] + R[1]; src = R[0] + R[1]
            elif base in ('v_fmac_f32', 'v_pk_fmac_f16', 'v_dot2c_f32_bf16') or 'UNUSED_PRESERVE' in mods or mn.endswith('_dpp') or 'row_' in mods or 'quad_perm' in mods or base == 'v_writelane_b32':
                dst = R[0]; src = sum(R, [])
            else:
                dst = R[0]; src = sum(R[1:], [])
            if base == 'v_cndmask_b32' and len(ops) == 3: src = src + [('s', 'vcc')]
        elif mn.startswith('ds_read') or mn.startswith('ds_bpermute') or mn.startswith('ds_swizzle') or mn.startswith('ds_permute'):
            i.kind = 'dsr'; dst = R[0]; src = sum(R[1:], [])
            if 'addtid' in mn: src = src + [('s', 'm0')]
        elif mn.startswith('ds_'):
            i.kind = 'dsw'; src = sum(R, [])
            if 'addtid' in mn: src = src + [('s', 'm0')]
        elif mn.startswith('buffer_load') or mn.startswith('global_load'):
            if ' lds' in (' ' + mods) or 'lds_' in mn:
                i.kind = 'dma'; src = sum(R, []) + [('s', 'm0')]
            else:
                i.kind = 'load'; dst = R[0]; src = sum(R[1:], [])
        elif mn.startswith('buffer_store') or mn.startswith('global_store') or mn.startswith('buffer_atomic') or mn.startswith('global_atomic'):
            i.kind = 'store'; src = sum(R, [])
        elif mn.startswith('buffer_') :
            i.kind = 'store'
        elif mn.startswith('s_load') or mn.startswith('s_memtime') or mn.startswith('s_memrealtime'):
            i.kind = 'smem'; dst = R[0]; src = sum(R[1:], [])
        elif mn.startswith('s_'):
            i.kind = 'salu'
            if any(mn.startswith(x) for x in NODST_S):
                src = sum(R, [])
            else:
                dst = R[0]; src = sum(R[1:], [])
                if 'saveexec' in mn: dst = dst + [('s', 'exec')]
        else:
            raise ValueError("unknown instr " + text)
        i.dst = dst; i.src = src
        for k, x in dst + src:
            if isinstance(x, int):
                if k == 'v': self.maxv = max(self.maxv, x)
                elif k == 'a': self.maxa = max(self.maxa, x)
                else: self.maxs = max(self.maxs, x)
        return i
    def need_states(self, c):
        need = 0; dist = 0
        cs = set(c.src); cd = set(c.dst)
        isvalu = c.kind in ('valu', 'trans')
        dpp = c.mn.endswith('_dpp') or 'row_' in c.mods or 'quad_perm' in c.mods
        base = re.sub(r'_(e32|e64|dpp|sdwa)$', '', c.mn)
        for p, st in reversed(self.hist):
            req = 0
            pd = set(p.dst)
            pv = {r for r in pd if r[0] in 'va'}
            ps = {r for r in pd if r[0] == 's'}
            if p.kind in ('valu', 'trans'):
                if c.kind == 'mfma' and (pv & cs): req = max(req, 2)
                if dpp and (pv & cs): req = max(req, 2)
                if base in ('v_readlane_b32', 'v_readfirstlane_b32') and (pv & cs): req = max(req, 1)
                if base.startswith('v_permlane') and (pv & cs): req = max(req, 2)
                if p.kind == 'trans' and (isvalu) and (pv & cs): req = max(req, 1)
                if p.kind == 'trans' and c.kind in ('dsw', 'store') and (pv & cs): req = max(req, 1)
                if ('sdwa' in p.mn or 'op_sel' in p.mods) and isvalu and not p.mn.startswith('v_pk') and (pv & (cs | cd)): req = max(req, 1)
                if ps & cs:
                    if isvalu or c.kind == 'mfma': req = max(req, 4 if base in ('v_readlane_b32', 'v_writelane_b32') else 2)
                    if c.kind in ('load', 'store', 'dma'): req = max(req, 5)
                    if c.kind in ('salu', 'smem'): req = max(req, 4)
                if ('s', 'exec') in ps: req = max(req, 5)
            elif p.kind == 'mfma':
                big = p.passes == 8
                if c.kind == 'mfma':
                    ab = set(c.src) - set(c.srcC) if False else set(regs_of(c.ops[1]) + regs_of(c.ops[2]))
                    if pv & ab: req = max(req, 12 if big else 8)
                    cc = set(c.srcC)
                    if pv & cc:
                        if not (cc == pv and c.passes == p.passes): req = max(req, 10 if big else 6)
                    elif pv & cd: req = max(req, 12 if big else 8)
                else:
                    if pv & (cs | cd): req = max(req, 12 if big else 8)
                    if isvalu and (set(p.srcC) & cd): req = max(req, 7 if big else 3)
            elif p.kind == 'store':
                if ('x4' in p.mn or 'x3' in p.mn) and (set(p.src) & cd): req = max(req, 2)
            elif p.kind == 'dsw':
                if ('b128' in p.mn or 'b96' in p.mn) and (set(p.src) & cd): req = max(req, 2)
            elif p.kind == 'salu':
                if ('s', 'm0') in pd and ('s', 'm0') in cs and c.kind in ('dma', 'dsr', 'dsw'): req = max(req, 1)
            need = max(need, req - dist)
            dist += st
            if dist > 20: break
        return need
    def auto_wait(self, c):
        touched = set(c.src) | set(c.dst)
        n = None
        for idx, regs in enumerate(self.vm):
            if regs & touched: n = len(self.vm) - 1 - idx
        m = None
        for idx, regs in enumerate(self.lg):
            if regs & touched: m = len(self.lg) - 1 - idx
        if m is not None and self.lg_smem: m = 0
        if n is not None or m is not None:
            self.waitcnt(vm=n, lgkm=m)
    def waitcnt(self, vm=None, lgkm=None):
        parts = []
        if vm is not None:
            vm = min(vm, 63)
            if vm < len(self.vm) or True:
                parts.append(f"vmcnt({vm})")
                self.vm = self.vm[len(self.vm) - vm:] if vm < len(self.vm) else self.vm
                if vm == 0: self.vm = []
        if lgkm is not None:
            lgkm = min(lgkm, 15)
            parts.append(f"lgkmcnt({lgkm})")
            self.lg = self.lg[len(self.lg) - lgkm:] if lgkm < len(self.lg) else self.lg
            if lgkm == 0: self.lg = []; self.lg_smem = False
        t = "s_waitcnt " + " ".join(parts)
        self.out.append("    " + t)
        i = Ins(); i.mn = 's_waitcnt'; i.kind = 'nop'; i.dst = []; i.src = []; i.passes = 0; i.srcC = []; i.mods = ''; i.ops = []
        self.hist.append((i, 1))
    def __call__(self, text):
        c = self.parse(text)
        if c.mn == 's_waitcnt':
            raise ValueError("use waitcnt()")
        self.auto_wait(c)
        n = self.need_states(c)
        if n > 0: self._nop(n)
        self.out.append("    " + text)
        st = 1
        if c.mn == 's_nop': st = int(c.ops[0]) + 1; c.kind = 'nop'
        self.hist.append((c, st))
        if len(self.hist) > 40: self.hist = self.hist[-30:]
        if c.kind in ('load',): self.vm.append(set(c.dst))
        elif c.kind in ('store', 'dma'): self.vm.append(set())
        elif c.kind == 'dsr': self.lg.append(set(c.dst))
        elif c.kind == 'dsw': self.lg.append(set())
        elif c.kind == 'smem':
            self.lg.append(set(c.dst)); self.lg.append(set()); self.lg_smem = True
        assert len(self.vm) <= 63 or True
    def text(self):
        return "\n".join(self.out) + "\n"

def kernel_text(name, asm, lds_note=None):
    nv = asm.maxv + 1
    acc_off = max(4, (nv + 3) // 4 * 4)
    nfv = acc_off + asm.maxa + 1 if asm.maxa >= 0 else max(nv, 1)
    ns = max(asm.maxs + 1, 8)
    return f""".text
.globl {name}
.p2align 8
.type {name},@function
{name}:
{asm.text()}
.section .rodata,"a"
.p2align 6
.amdhsa_kernel {name}
  .amdhsa_next_free_vgpr {nfv}
  .amdhsa_next_free_sgpr {ns}
  .amdhsa_accum_offset {acc_off}
  .amdhsa_group_segment_fixed_size 0
  .amdhsa_kernarg_size 72
  .amdhsa_user_sgpr_count 2
  .amdhsa_user_sgpr_kernarg_segment_ptr 1
  .amdhsa_system_sgpr_workgroup_id_x 1
.end_amdhsa_kernel
"""
```

```python
import sys, struct
from asmlib import *
from layout import *

FWD = 'f16'
INV = 'bf16'
WS_SIZE = 64 << 20
BAD = 0x40000000

def f32hex(x): return "0x%08x" % struct.unpack("<I", struct.pack("<f", x))[0]
def cvtpk(dt): return f"v_cvt_pk_{dt}_f32"
def mfma16(dt): return f"v_mfma_f32_16x16x32_{dt}"

def srd(A, d, b, size):
    A(f"s_mov_b32 s{d}, s{b}")
    A(f"s_and_b32 s{d+1}, s{b+1}, 0xffff")
    A(f"s_mov_b32 s{d+2}, {size}")
    A(f"s_mov_b32 s{d+3}, 0x20000")

def wave_reduce_add(A, regs, tmp_unused=None):
    for mod in ("row_shr:1 row_mask:0xf bank_mask:0xf bound_ctrl:0", "row_shr:2 row_mask:0xf bank_mask:0xf bound_ctrl:0",
                "row_shr:4 row_mask:0xf bank_mask:0xf bound_ctrl:0", "row_shr:8 row_mask:0xf bank_mask:0xf bound_ctrl:0",
                "row_bcast:15 row_mask:0xa bank_mask:0xf", "row_bcast:31 row_mask:0xc bank_mask:0xf"):
        for r in regs:
            A(f"v_add_f32_dpp {v(r)}, {v(r)}, {v(r)} {mod}")

def round_bf16_inplace(A, r, tmp):
    A(f"v_cvt_pk_bf16_f32 {v(tmp)}, {v(r)}, {v(r)}")
    A(f"v_lshlrev_b32 {v(r)}, 16, {v(tmp)}")

def layernorm_rows(A, rows, tmp, sreg, out_dt, outs):
    n = len(rows)
    S = [tmp + i for i in range(n)]
    M = [tmp + n + i for i in range(n)]
    T = [tmp + 2 * n + i for i in range(n)]
    T2 = [tmp + 3 * n + i for i in range(n)]
    D = [tmp + 4 * n + 8 * i for i in range(n)]
    for k in range(n):
        x = rows[k]
        A(f"v_add_f32 {v(S[k])}, {v(x)}, {v(x+1)}")
        A(f"v_add_f32 {v(T[k])}, {v(x+2)}, {v(x+3)}")
        A(f"v_add_f32 {v(T2[k])}, {v(x+4)}, {v(x+5)}")
        A(f"v_add_f32 {v(M[k])}, {v(x+6)}, {v(x+7)}")
        A(f"v_add_f32 {v(S[k])}, {v(S[k])}, {v(T[k])}")
        A(f"v_add_f32 {v(T2[k])}, {v(T2[k])}, {v(M[k])}")
        A(f"v_add_f32 {v(S[k])}, {v(S[k])}, {v(T2[k])}")
    wave_reduce_add(A, S)
    for k in range(n):
        A(f"v_readlane_b32 s{sreg+k}, {v(S[k])}, 63")
    for k in range(n):
        A(f"v_mul_f32 {v(M[k])}, {f32hex(1/512)}, {v(S[k])}") if False else None
        A(f"v_mov_b32 {v(M[k])}, {f32hex(1/512)}")
        A(f"v_mul_f32 {v(M[k])}, s{sreg+k}, {v(M[k])}")
    for k in range(n):
        x = rows[k]; d = D[k]
        for e in range(8):
            A(f"v_sub_f32 {v(d+e)}, {v(x+e)}, {v(M[k])}")
        A(f"v_mul_f32 {v(S[k])}, {v(d)}, {v(d)}")
        A(f"v_mul_f32 {v(T[k])}, {v(d+1)}, {v(d+1)}")
        for e in range(2, 8, 2):
            A(f"v_fmac_f32 {v(S[k])}, {v(d+e)}, {v(d+e)}")
            A(f"v_fmac_f32 {v(T[k])}, {v(d+e+1)}, {v(d+e+1)}")
        A(f"v_add_f32 {v(S[k])}, {v(S[k])}, {v(T[k])}")
    wave_reduce_add(A, S)
    for k in range(n):
        round_bf16_inplace(A, M[k], T[k])
    for k in range(n):
        A(f"v_readlane_b32 s{sreg+k}, {v(S[k])}, 63")
    for k in range(n):
        x = rows[k]; d = D[k]
        for e in range(8):
            A(f"v_sub_f32 {v(d+e)}, {v(x+e)}, {v(M[k])}")
        for e in range(0, 8, 2):
            A(f"v_cvt_pk_bf16_f32 {v(d+e)}, {v(d+e)}, {v(d+e+1)}")
            A(f"v_and_b32 {v(d+e+1)}, 0xffff0000, {v(d+e)}")
            A(f"v_lshlrev_b32 {v(d+e)}, 16, {v(d+e)}")
    for k in range(n):
        A(f"v_mov_b32 {v(S[k])}, {f32hex(1/512)}")
        A(f"v_mul_f32 {v(S[k])}, s{sreg+k}, {v(S[k])}")
    for k in range(n): round_bf16_inplace(A, S[k], T[k])
    for k in range(n): A(f"v_add_f32 {v(S[k])}, {f32hex(1e-5)}, {v(S[k])}")
    for k in range(n): round_bf16_inplace(A, S[k], T[k])
    for k in range(n): A(f"v_sqrt_f32 {v(S[k])}, {v(S[k])}")
    for k in range(n): round_bf16_inplace(A, S[k], T[k])
    for k in range(n): A(f"v_rcp_f32 {v(S[k])}, {v(S[k])}")
    for k in range(n):
        d = D[k]; o = outs[k]
        for e in range(8):
            A(f"v_mul_f32 {v(d+e)}, {v(d+e)}, {v(S[k])}")
        for e in range(0, 8, 2):
            if out_dt == 'bf16':
                A(f"v_cvt_pk_bf16_f32 {v(o+e//2)}, {v(d+e)}, {v(d+e+1)}")
            else:
                A(f"v_cvt_pk_bf16_f32 {v(d+e)}, {v(d+e)}, {v(d+e+1)}")
                A(f"v_and_b32 {v(d+e+1)}, 0xffff0000, {v(d+e)}")
                A(f"v_lshlrev_b32 {v(d+e)}, 16, {v(d+e)}")
                A(f"v_cvt_pk_f16_f32 {v(o+e//2)}, {v(d+e)}, {v(d+e+1)}")

NA_ROW, NA_WT, NA_PK = 128, 128, 60
def kernel_A():
    A = Asm()
    A("s_load_dwordx4 s[4:7], s[0:1], 0")
    A("s_load_dwordx2 s[8:9], s[0:1], 16")
    A("s_load_dwordx4 s[12:15], s[0:1], 32")
    A("s_load_dwordx2 s[10:11], s[0:1], 64")
    A(f"s_cmp_ge_u32 s2, {NA_ROW+NA_WT+NA_PK}")
    A("s_cbranch_scc1 LA_end")
    A("v_and_b32 v1, 63, v0")
    A("v_lshrrev_b32 v4, 6, v0")
    A("v_and_b32 v2, 15, v0")
    A("v_readfirstlane_b32 s40, v4")
    A("v_lshrrev_b32 v3, 4, v1")
    A.waitcnt(lgkm=0)
    srd(A, 20, 10, WS_SIZE)
    A(f"s_cmp_ge_u32 s2, {NA_ROW+NA_WT}")
    A("s_cbranch_scc1 LA_pack")
    A(f"s_cmp_ge_u32 s2, {NA_ROW}")
    A("s_cbranch_scc1 LA_wt")
    srd(A, 16, 4, 2097152)
    A("s_lshr_b32 s41, s2, 5")
    A("s_and_b32 s42, s2, 31")
    A("s_lshl_b32 s41, s41, 9")
    A("s_lshl_b32 s43, s40, 6")
    A("s_add_u32 s41, s41, s43")
    A("s_add_u32 s41, s41, s42")
    A("s_lshl_b32 s41, s41, 10")
    A("s_add_u32 s42, s41, 32768")
    A("v_lshlrev_b32 v5, 4, v1")
    XR = [8, 12]
    A(f"buffer_load_dwordx4 {v(XR[0],4)}, v5, s[16:19], s41 offen")
    A(f"buffer_load_dwordx4 {v(XR[1],4)}, v5, s[16:19], s42 offen")
    FRE, FIM = 16, 20
    B2 = 24
    COL = 40
    t0 = 44
    A(f"v_cvt_f32_u32 {v(t0)}, v2")
    A(f"v_lshlrev_b32 {v(t0+1)}, 2, v3")
    A(f"v_cvt_f32_u32 {v(t0+1)}, {v(t0+1)}")
    A(f"v_mul_f32 {v(t0+2)}, {f32hex(1/32)}, {v(t0)}")
    A("v_cmp_eq_u32 vcc, 0, v2")
    A(f"v_mov_b32 {v(t0+5)}, 0.5")
    A(f"v_mov_b32 {v(t0+6)}, {f32hex(0.25)}")
    A(f"v_cndmask_b32 {v(t0+3)}, {v(t0+2)}, {v(t0+5)}, vcc")
    A(f"v_cndmask_b32 {v(t0+4)}, {v(t0+6)}, 0, vcc")
    A(f"v_mul_f32 {v(t0+5)}, {v(t0+1)}, {v(t0+2)}")
    A(f"v_fma_f32 {v(t0+6)}, {v(t0+1)}, {v(t0+3)}, {v(t0+4)}")
    for (dst, kreg, areg) in ((FRE, t0+2, t0+5), (FIM, t0+3, t0+6)):
        for u in range(2):
            for e in range(4):
                A(f"v_fmamk_f32 {v(t0+8+e)}, {v(kreg)}, {f32hex(16*u+e)}, {v(areg)}")
            for e in range(4):
                A(f"v_cos_f32 {v(t0+8+e)}, {v(t0+8+e)}")
            A(f"{cvtpk(FWD)} {v(dst+2*u)}, {v(t0+8)}, {v(t0+9)}")
            A(f"{cvtpk(FWD)} {v(dst+2*u+1)}, {v(t0+10)}, {v(t0+11)}")
    A("v_cmp_gt_u32 vcc, 8, v2")
    A(f"v_and_b32 {v(t0+2)}, 7, v2")
    A(f"v_lshlrev_b32 {v(t0+2)}, 5, {v(t0+2)}")
    A(f"v_mov_b32 {v(t0+4)}, -1.0")
    A(f"v_cndmask_b32 {v(t0+3)}, {v(t0+4)}, 1.0, vcc")
    A(f"v_lshlrev_b32 {v(t0+12)}, 4, v3")
    A("s_lshl_b32 s43, s2, 14")
    A(f"s_add_u32 s43, s43, {OFF_X1}")
    for b2 in range(2):
        A(f"s_lshl_b32 s44, s40, 1")
        if b2: A("s_add_u32 s44, s44, 1")
        A("s_sub_u32 s45, 32, s44")
        if b2 == 0:
            A("s_cmp_eq_u32 s44, 0")
            A("s_cselect_b32 s45, 16, s45")
        A(f"v_mov_b32 {v(t0+4)}, s45")
        A(f"v_mov_b32 {v(t0+5)}, s44")
        A(f"v_cndmask_b32 {v(t0+4)}, {v(t0+4)}, {v(t0+5)}, vcc")
        A(f"v_add_u32 {v(t0+4)}, {v(t0+4)}, {v(t0+2)}")
        A(f"v_lshl_add_u32 {v(COL+b2)}, {v(t0+4)}, 6, {v(t0+12)}")
        A(f"v_cvt_f32_u32 {v(t0+4)}, {v(t0+4)}")
        A(f"v_mul_f32 {v(t0+4)}, {f32hex(1/512)}, {v(t0+4)}")
        A(f"v_mul_f32 {v(t0+5)}, {v(t0+1)}, {v(t0+4)}")
        base = B2 + 8 * b2
        if b2 == 0:
            A("s_cmp_eq_u32 s40, 0")
            A("s_cbranch_scc1 LA_slot0")
        for r in range(4):
            A(f"v_fmamk_f32 {v(t0+6)}, {v(t0+4)}, {f32hex(r)}, {v(t0+5)}")
            A(f"v_cos_f32 {v(t0+7)}, {v(t0+6)}")
            A(f"v_sin_f32 {v(t0+8)}, {v(t0+6)}")
            A(f"v_mul_f32 {v(t0+9)}, {v(t0+3)}, {v(t0+7)}")
            A(f"v_mul_f32 {v(t0+10)}, {v(t0+3)}, {v(t0+8)}")
            A(f"{cvtpk(FWD)} {v(base+r)}, {v(t0+7)}, {v(t0+10)}")
            A(f"{cvtpk(FWD)} {v(base+4+r)}, -{v(t0+8)}, {v(t0+9)}")
        if b2 == 0:
            A("s_branch LA_slot0_done")
            A.label("LA_slot0", keep=True)
            A(f"v_cndmask_b32 {v(t0+13)}, 0, 1.0, vcc")
            A(f"v_cndmask_b32 {v(t0+14)}, 1.0, 0, vcc")
            A("v_cmp_eq_u32 s[46:47], 0, v2")
            for r in range(4):
                A(f"v_fmamk_f32 {v(t0+6)}, {v(t0+4)}, {f32hex(r)}, {v(t0+5)}")
                A(f"v_cos_f32 {v(t0+7)}, {v(t0+6)}")
                A(f"v_sin_f32 {v(t0+8)}, {v(t0+6)}")
                A(f"v_cndmask_b32 {v(t0+8)}, {v(t0+8)}, {'-1.0' if r % 2 == 0 else '1.0'}, s[46:47]")
                A(f"v_mul_f32 {v(t0+9)}, {v(t0+13)}, {v(t0+7)}")
                A(f"v_mul_f32 {v(t0+10)}, {v(t0+14)}, {v(t0+7)}")
                A(f"{cvtpk(FWD)} {v(base+r)}, {v(t0+9)}, {v(t0+10)}")
                A(f"v_mul_f32 {v(t0+9)}, {v(t0+13)}, {v(t0+8)}")
                A(f"v_mul_f32 {v(t0+10)}, {v(t0+14)}, {v(t0+8)}")
                A(f"{cvtpk(FWD)} {v(base+4+r)}, -{v(t0+9)}, -{v(t0+10)}")
            A.label("LA_slot0_done")
    AW, AT, AU, AR = 42, 43, 6, 7
    A("s_lshl_b32 s44, s40, 11")
    A(f"v_add_u32 {v(AW)}, s44, v5")
    A(f"v_lshlrev_b32 {v(AT)}, 3, v1")
    A(f"v_add_u32 {v(AT)}, s44, {v(AT)}")
    A("s_lshr_b32 s45, s40, 2")
    A("s_lshl_b32 s45, s45, 1")
    A(f"v_xor_b32 {v(AU)}, s45, v3")
    A(f"v_lshlrev_b32 {v(AU)}, 4, {v(AU)}")
    A(f"v_mul_u32_u24 {v(t0)}, 1040, v2")
    A(f"v_add_u32 {v(AU)}, {v(AU)}, {v(t0)}")
    A("s_lshl_b32 s45, s40, 7")
    A(f"v_add_u32 {v(AU)}, s45, {v(AU)}")
    A(f"v_lshrrev_b32 {v(t0)}, 3, v2")
    A(f"v_lshlrev_b32 {v(t0)}, 1, {v(t0)}")
    A(f"v_xor_b32 {v(t0)}, {v(t0)}, v3")
    A(f"v_lshlrev_b32 {v(t0)}, 4, {v(t0)}")
    A(f"v_lshl_add_u32 {v(AR)}, v2, 6, {v(t0)}")
    A("s_mul_i32 s45, s40, 2080")
    A(f"v_add_u32 {v(AR)}, s45, {v(AR)}")
    XF = [64, 72]
    for b in range(2):
        for e in range(4):
            A(f"v_lshlrev_b32 {v(XF[b]+2*e)}, 16, {v(XR[b]+e)}")
            A(f"v_and_b32 {v(XF[b]+2*e+1)}, 0xffff0000, {v(XR[b]+e)}")
    layernorm_rows(A, XF, 80, 48, FWD, XR)
    for b in range(2):
        A(f"ds_write_b128 {v(AW)}, {v(XR[b],4)} offset:{b*1024}")
    A.waitcnt(lgkm=0)
    for b in range(2):
        for u in range(2):
            A(f"ds_read_b64_tr_b16 {v(XF[b]+2*u,2)}, {v(AT)} offset:{b*1024+u*512}")
    ACC = 80
    for b in range(2):
        A(f"{mfma16(FWD)} {v(ACC+8*b,4)}, {v(XF[b],4)}, {v(FRE,4)}, 0")
        A(f"{mfma16(FWD)} {v(ACC+8*b+4,4)}, {v(XF[b],4)}, {v(FIM,4)}, 0")
    for b in range(2):
        for r in range(4):
            A(f"{cvtpk(FWD)} {v(XR[b]+r)}, {v(ACC+8*b+r)}, {v(ACC+8*b+4+r)}")
        A(f"ds_write_b128 {v(AU)}, {v(XR[b],4)} offset:{16384+b*64}")
    A.waitcnt(lgkm=0)
    A("s_barrier")
    for b2 in range(2):
        A(f"ds_read_b128 {v(XF[b2],4)}, {v(AR)} offset:{16384+b2*1040}")
    for b2 in range(2):
        A(f"{mfma16(FWD)} {v(ACC+8*b2,4)}, {v(XF[b2],4)}, {v(B2+8*b2,4)}, 0")
        A(f"{mfma16(FWD)} {v(ACC+8*b2+4,4)}, {v(XF[b2],4)}, {v(B2+8*b2+4,4)}, 0")
    for b2 in range(2):
        for r in range(4):
            A(f"{cvtpk(FWD)} {v(XR[b2]+r)}, {v(ACC+8*b2+r)}, {v(ACC+8*b2+4+r)}")
        A(f"buffer_store_dwordx4 {v(XR[b2],4)}, {v(COL+b2)}, s[20:23], s43 offen")
    A("s_endpgm")
    A.reset_state()
    A.label("LA_wt")
    srd(A, 24, 6, 2048 * 514)
    srd(A, 28, 8, 2048 * 514)
    A(f"s_sub_u32 s41, s2, {NA_ROW}")
    A("s_lshr_b32 s42, s41, 1")
    A("s_and_b32 s43, s41, 1")
    A("s_lshr_b32 s44, s40, 2")
    A("s_lshl_b32 s43, s43, 1")
    A("s_add_u32 s43, s43, s44")
    A("s_lshl_b32 s43, s43, 8")
    A("s_add_u32 s42, s42, s43")
    A("s_mul_i32 s42, s42, 514")
    A("s_and_b32 s45, s40, 3")
    A("s_lshl_b32 s45, s45, 6")
    A("v_add_u32 v5, s45, v1")
    A("v_lshlrev_b32 v6, 1, v5")
    for z in range(8):
        mt, r = z >> 2, z & 3
        A(f"s_add_u32 s{48+z}, s42, {32896*(16*mt+r)}")
    for z in range(8):
        A(f"buffer_load_ushort {v(8+z)}, v6, s[24:27], s{48+z} offen")
        A(f"buffer_load_ushort {v(16+z)}, v6, s[28:31], s{48+z} offen")
    A("v_lshrrev_b32 v24, 2, v1")
    A("v_lshlrev_b32 v24, 4, v24")
    A("v_and_b32 v25, 3, v1")
    A("v_add_u32 v24, v24, v25")
    A("s_mov_b32 s46, 32896")
    A("v_mul_lo_u32 v24, v24, s46")
    A("v_add_u32 v24, 512, v24")
    A("v_cmp_gt_u32 vcc, 8, v5")
    A(f"v_mov_b32 v26, {BAD}")
    A("v_cndmask_b32 v24, v26, v24, vcc")
    A("buffer_load_ushort v27, v24, s[24:27], s42 offen")
    A("buffer_load_ushort v28, v24, s[28:31], s42 offen")
    A(f"s_mul_i32 s46, s41, {WT_PITCH}")
    A("s_lshl_b32 s47, s44, 5")
    A("s_add_u32 s46, s46, s47")
    A(f"s_add_u32 s46, s46, {OFF_WT}")
    A("v_lshlrev_b32 v7, 6, v5")
    A("v_lshlrev_b32 v25, 2, v1")
    A("v_add_u32 v25, 16384, v25")
    A("v_cndmask_b32 v25, v26, v25, vcc")
    for z in range(8):
        A(f"v_lshl_or_b32 {v(8+z)}, {v(16+z)}, 16, {v(8+z)}")
    A("buffer_store_dwordx4 v[8:11], v7, s[20:23], s46 offen")
    A("buffer_store_dwordx4 v[12:15], v7, s[20:23], s46 offen offset:16")
    A("v_lshl_or_b32 v27, v28, 16, v27")
    A("buffer_store_dword v27, v25, s[20:23], s46 offen")
    A("s_endpgm")
    A.reset_state()
    A.label("LA_pack")
    emit_pack(A, NA_ROW + NA_WT, "LA")
    A.label("LA_end")
    A("s_endpgm")
    return A

def emit_pack(A, first_wg, pfx):
    A(f"s_sub_u32 s41, s2, {first_wg}")
    A("s_lshl_b32 s41, s41, 3")
    A("s_add_u32 s41, s41, s40")
    A("s_lshl_b32 s50, s40, 13")
    A("v_lshrrev_b32 v5, 2, v1")
    A("v_and_b32 v5, 3, v5")
    A("v_lshl_add_u32 v5, v3, 3, v5")
    A("v_lshlrev_b32 v5, 8, v5")
    A("v_add_u32 v5, s50, v5")
    A("v_and_b32 v6, 3, v1")
    A("v_lshlrev_b32 v7, 4, v1")
    A("v_lshlrev_b32 v8, 4, v2")
    A("s_cmp_ge_u32 s41, 256")
    A(f"s_cbranch_scc1 {pfx}_pack2")
    srd(A, 32, 12, 512 * 3584)
    A("s_lshr_b32 s42, s41, 4")
    A("s_and_b32 s43, s41, 15")
    A("s_mul_i32 s44, s43, 114688")
    A("s_mul_i32 s45, s42, 224")
    A("s_add_u32 s44, s44, s45")
    A("v_mul_u32_u24 v9, 3584, v3")
    A("v_add_u32 v9, v9, v8")
    for ins in range(8):
        A(f"s_add_u32 m0, s50, {ins*1024}")
        A(f"buffer_load_dwordx4 v9, s[32:35], s44 offen lds")
        if ins < 7: A(f"s_add_u32 s44, s44, {4*3584}")
    A("s_mul_i32 s46, s41, 7168")
    A(f"s_add_u32 s46, s46, {OFF_W1P}")
    A("v_lshl_add_u32 v10, v6, 4, v5")
    A("v_lshl_add_u32 v11, v6, 3, v5")
    A.waitcnt(vm=0)
    for ft in range(7):
        for u in range(2):
            if ft < 6:
                A(f"ds_read_b64_tr_b16 {v(16+4*ft+2*u,2)}, v10 offset:{u*1024 + 64*(ft//2) + 8*(ft%2)}")
            else:
                A(f"ds_read_b64_tr_b16 {v(16+4*ft+2*u,2)}, v11 offset:{u*1024 + 192}")
    for ft in range(7):
        if ft == 4: A("s_add_u32 s46, s46, 4096")
        A(f"buffer_store_dwordx4 {v(16+4*ft,4)}, v7, s[20:23], s46 offen offset:{(ft%4)*1024}")
    A("s_endpgm")
    A.reset_state()
    A.label(f"{pfx}_pack2")
    srd(A, 36, 14, 1792 * 1024)
    A("s_sub_u32 s41, s41, 256")
    A("s_lshr_b32 s42, s41, 2")
    A("s_and_b32 s43, s41, 3")
    A("s_mul_i32 s44, s42, 37")
    A("s_lshr_b32 s44, s44, 8")
    A("s_mul_i32 s45, s44, 7")
    A("s_sub_u32 s45, s42, s45")
    A("s_mul_i32 s44, s44, 224")
    A("s_cmp_ge_u32 s45, 3")
    A("s_cselect_b32 s46, 16, 0")
    A("s_lshl_b32 s47, s45, 5")
    A("s_add_u32 s46, s46, s47")
    A("s_cmp_eq_u32 s45, 6")
    A("s_cselect_b32 s46, 96, s46")
    A(f"s_cselect_b32 s47, 112, 4")
    A(f"s_cselect_b32 s48, 4, 8")
    A("s_lshl_b32 s47, s47, 10")
    A("s_lshl_b32 s48, s48, 10")
    A("s_add_u32 s44, s44, s46")
    A("s_lshl_b32 s44, s44, 10")
    A("s_lshl_b32 s49, s43, 8")
    A("s_add_u32 s44, s44, s49")
    A("v_lshl_add_u32 v9, v3, 10, v8")
    for ins in range(8):
        A(f"s_add_u32 m0, s50, {ins*1024}")
        if ins & 1:
            A("s_add_u32 s49, s44, s47")
            A(f"buffer_load_dwordx4 v9, s[36:39], s49 offen lds")
            A("s_add_u32 s44, s44, s48")
        else:
            A(f"buffer_load_dwordx4 v9, s[36:39], s44 offen lds")
    A("s_mul_i32 s46, s43, 112")
    A("s_add_u32 s46, s46, s42")
    A("s_lshl_b32 s46, s46, 12")
    A(f"s_add_u32 s46, s46, {OFF_W2P}")
    A(f"s_add_u32 s47, s46, {56*4096}")
    A("v_lshl_add_u32 v11, v6, 3, v5")
    A.waitcnt(vm=0)
    for dt8 in range(8):
        for u in range(2):
            A(f"ds_read_b64_tr_b16 {v(16+4*dt8+2*u,2)}, v11 offset:{u*1024 + 32*dt8}")
    for dt8 in range(8):
        A(f"buffer_store_dwordx4 {v(16+4*dt8,4)}, v7, s[20:23], s{46 + dt8//4} offen offset:{(dt8%4)*1024}")
    A("s_endpgm")

NB_COL = 257
def kernel_B():
    A = Asm()
    A("s_load_dwordx2 s[10:11], s[0:1], 64")
    A(f"s_cmp_ge_u32 s2, {NB_COL}")
    A("s_cbranch_scc1 LB_end")
    A("v_and_b32 v1, 63, v0")
    A("v_lshrrev_b32 v4, 6, v0")
    A("v_and_b32 v2, 15, v0")
    A("v_readfirstlane_b32 s40, v4")
    A("v_lshrrev_b32 v3, 4, v1")
    A("s_and_b32 s41, s2, 0x1f0")
    A("s_and_b32 s42, s2, 7")
    A("s_lshl_b32 s42, s42, 1")
    A("s_add_u32 s41, s41, s42")
    A("s_lshr_b32 s42, s2, 3")
    A("s_and_b32 s42, s42, 1")
    A("s_add_u32 s41, s41, s42")
    A("s_and_b32 s42, s41, 255")
    A("s_lshl_b32 s43, s42, 6")
    A("s_lshl_b32 s44, s40, 19")
    A("s_add_u32 s43, s43, s44")
    if OFF_X1: A(f"s_add_u32 s43, s43, {OFF_X1}")
    A(f"s_add_u32 s44, s43, {16*16384}")
    A("v_lshlrev_b32 v5, 14, v2")
    A("v_lshl_add_u32 v5, v3, 4, v5")
    A(f"s_mul_i32 s45, s40, {32*WT_PITCH}")
    A("s_lshl_b32 s46, s41, 6")
    A("s_add_u32 s45, s45, s46")
    A(f"s_add_u32 s45, s45, {OFF_WT}")
    A("v_lshrrev_b32 v6, 1, v3")
    A("v_lshl_add_u32 v6, v2, 1, v6")
    A(f"v_mul_u32_u24 v6, {WT_PITCH}, v6")
    A("v_and_b32 v7, 1, v3")
    A("v_lshl_add_u32 v6, v7, 5, v6")
    A("s_lshl_b32 s46, s40, 11")
    A.waitcnt(lgkm=0)
    srd(A, 20, 10, WS_SIZE)
    A("s_mov_b32 m0, s46")
    A("buffer_load_dwordx4 v5, s[20:23], s43 offen lds")
    A("s_add_u32 m0, s46, 1024")
    A("buffer_load_dwordx4 v5, s[20:23], s44 offen lds")
    WV = 8
    A(f"buffer_load_dwordx4 {v(WV,4)}, v6, s[20:23], s45 offen")
    A(f"buffer_load_dwordx4 {v(WV+4,4)}, v6, s[20:23], s45 offen offset:16")
    ERE, EIM = 16, 32
    ERE2, EIM2 = 48, 64
    CM, SM, NM = 80, 88, 96
    CM2, SM2, NM2 = 104, 112, 120
    TC, TS = 128, 136
    D = 144
    ACC = 176
    AC2 = 192
    BRE, BIM = 208, 212
    WR, WI = 216, 224
    t0 = 232
    same = FWD == INV
    if same: ERE2, EIM2, CM2, SM2, NM2 = ERE, EIM, CM, SM, NM
    A("s_lshl_b32 s47, s40, 4")
    A(f"v_add_u32 {v(t0)}, s47, v2")
    A(f"v_cvt_f32_u32 {v(t0)}, {v(t0)}")
    A(f"v_lshlrev_b32 {v(t0+1)}, 2, v3")
    A(f"v_cvt_f32_u32 {v(t0+1)}, {v(t0+1)}")
    A(f"v_mul_f32 {v(t0+2)}, {f32hex(1/64)}, {v(t0)}")
    A(f"v_mul_f32 {v(t0+3)}, {v(t0+1)}, {v(t0+2)}")
    for t_ in range(4):
        for r in range(4):
            x = t0 + 4 + 3 * (r & 1)
            A(f"v_fmamk_f32 {v(x)}, {v(t0+2)}, {f32hex(16*t_+r)}, {v(t0+3)}")
            A(f"v_cos_f32 {v(x+1)}, {v(x)}")
            A(f"v_sin_f32 {v(x+2)}, {v(x)}")
            A(f"{cvtpk(FWD)} {v(ERE+4*t_+r)}, {v(x+1)}, {v(x+2)}")
            A(f"{cvtpk(FWD)} {v(EIM+4*t_+r)}, -{v(x+2)}, {v(x+1)}")
            if not same:
                A(f"{cvtpk(INV)} {v(ERE2+4*t_+r)}, {v(x+1)}, {v(x+2)}")
                A(f"{cvtpk(INV)} {v(EIM2+4*t_+r)}, -{v(x+2)}, {v(x+1)}")
    A(f"v_mul_f32 {v(t0+2)}, {f32hex(1/2048)}, {v(t0)}")
    A(f"v_mul_f32 {v(t0+3)}, {v(t0+1)}, {v(t0+2)}")
    for z in range(8):
        mt, r = z >> 2, z & 3
        x = t0 + 4 + (z & 1)
        A(f"v_fmamk_f32 {v(x)}, {v(t0+2)}, {f32hex(16*mt+r)}, {v(t0+3)}")
        A(f"v_cos_f32 {v(TC+z)}, {v(x)}")
        A(f"v_sin_f32 {v(TS+z)}, {v(x)}")
    for z in range(8):
        A(f"v_mul_f32 {v(TC+z)}, {f32hex(2.0**-8)}, {v(TC+z)}")
        A(f"v_mul_f32 {v(TS+z)}, {f32hex(2.0**-8)}, {v(TS+z)}")
    A(f"v_cvt_f32_u32 {v(t0)}, v2")
    for mtp in range(2):
        if mtp == 0: A(f"v_mul_f32 {v(t0+2)}, {f32hex(1/32)}, {v(t0)}")
        else: A(f"v_add_f32 {v(t0+2)}, 0.5, {v(t0+2)}")
        A(f"v_mul_f32 {v(t0+3)}, {v(t0+1)}, {v(t0+2)}")
        for p in range(4):
            mt, r0 = p >> 1, (p & 1) * 2
            x = t0 + 4
            for d in range(2):
                A(f"v_fmamk_f32 {v(x+d)}, {v(t0+2)}, {f32hex(16*mt+r0+d)}, {v(t0+3)}")
            for d in range(2):
                A(f"v_cos_f32 {v(x+2+d)}, {v(x+d)}")
                A(f"v_sin_f32 {v(x+4+d)}, {v(x+d)}")
            for (dt, c_, s_, n_) in ((FWD, CM, SM, NM),) + (() if same else ((INV, CM2, SM2, NM2),)):
                A(f"{cvtpk(dt)} {v(c_+4*mtp+p)}, {v(x+2)}, {v(x+3)}")
                A(f"{cvtpk(dt)} {v(s_+4*mtp+p)}, {v(x+4)}, {v(x+5)}")
                A(f"{cvtpk(dt)} {v(n_+4*mtp+p)}, -{v(x+4)}, -{v(x+5)}")
    AL, AWr, ARd, AO = 4, 5, 6, 7
    A(f"v_lshlrev_b32 {v(AL)}, 4, v1")
    A(f"v_mul_u32_u24 {v(AWr)}, 1088, v3")
    A(f"v_lshl_add_u32 {v(AWr)}, v2, 2, {v(AWr)}")
    A("s_lshl_b32 s47, s40, 6")
    A(f"v_add_u32 {v(AWr)}, s47, {v(AWr)}")
    A(f"v_mul_u32_u24 {v(ARd)}, 272, v2")
    A(f"v_lshl_add_u32 {v(ARd)}, v3, 4, {v(ARd)}")
    A(f"v_lshlrev_b32 {v(AO)}, 8, v2")
    A(f"v_lshl_add_u32 {v(AO)}, v3, 4, {v(AO)}")
    A("s_lshl_b32 s48, s42, 13")
    A("s_add_u32 s48, s48, s47")
    A(f"s_add_u32 s48, s48, {OFF_X2}")
    A("s_add_u32 s49, s48, 4096")
    A.waitcnt(vm=2)
    A("s_barrier")
    for f in range(8):
        A(f"ds_read_b128 {v(D+4*f,4)}, {v(AL)} offset:{f*1024}")
    A("s_cmp_lg_u32 s42, 0")
    A("s_cbranch_scc1 LB_nospecial")
    A.waitcnt(lgkm=0)
    A("s_lshr_b32 s50, s41, 4")
    for r in range(32):
        A(f"v_lshrrev_b32 {v(D+r)}, s50, {v(D+r)}")
        A(f"v_and_b32 {v(D+r)}, 0xffff, {v(D+r)}")
    A("s_nop 1")
    A.label("LB_nospecial", keep=True)
    A.lg = [set(regs_of(v(D+4*f,4))) for f in range(8)]
    def R(base, mt): return v(base + 4 * mt, 4)
    for t_ in range(4):
        for mt in range(2):
            f = 2 * t_ + mt
            c0 = "0" if t_ == 0 else R(ACC, mt)
            c1 = "0" if t_ == 0 else R(ACC + 8, mt)
            A(f"{mfma16(FWD)} {R(ACC,mt)}, {v(D+4*f,4)}, {v(ERE+4*t_,4)}, {c0}")
            A(f"{mfma16(FWD)} {R(ACC+8,mt)}, {v(D+4*f,4)}, {v(EIM+4*t_,4)}, {c1}")
    for z in range(8):
        A(f"v_lshlrev_b32 {v(WR+z)}, 16, {v(WV+z)}")
        A(f"v_and_b32 {v(WI+z)}, 0xffff0000, {v(WV+z)}")
    def twiddle(src, dstre, dstim):
        for z in range(8):
            A(f"v_mul_f32 {v(dstre+z)}, {v(src+z)}, {v(TC+z)}")
            A(f"v_mul_f32 {v(dstim+z)}, {v(src+8+z)}, {v(TC+z)}")
        for z in range(8):
            A(f"v_fmac_f32 {v(dstre+z)}, {v(src+8+z)}, {v(TS+z)}")
            A(f"v_fma_f32 {v(dstim+z)}, -{v(src+z)}, {v(TS+z)}, {v(dstim+z)}")
    def dft32(dt, c_, s_, n_, dst):
        for mtp in range(2):
            A(f"{mfma16(dt)} {R(dst,mtp)}, {R(c_,mtp)}, {v(BRE,4)}, 0")
            A(f"{mfma16(dt)} {R(dst+8,mtp)}, {R(c_,mtp)}, {v(BIM,4)}, 0")
        for mtp in range(2):
            A(f"{mfma16(dt)} {R(dst,mtp)}, {R(s_,mtp)}, {v(BIM,4)}, {R(dst,mtp)}")
            A(f"{mfma16(dt)} {R(dst+8,mtp)}, {R(n_,mtp)}, {v(BRE,4)}, {R(dst+8,mtp)}")
    twiddle(ACC, AC2, AC2 + 8)
    for p in range(4):
        A(f"{cvtpk(FWD)} {v(BRE+p)}, {v(AC2+2*p)}, {v(AC2+2*p+1)}")
        A(f"{cvtpk(FWD)} {v(BIM+p)}, {v(AC2+8+2*p)}, {v(AC2+8+2*p+1)}")
    dft32(FWD, CM, SM, NM, ACC)
    for z in range(8):
        A(f"v_mul_f32 {v(AC2+z)}, {v(ACC+z)}, {v(WR+z)}")
        A(f"v_mul_f32 {v(AC2+8+z)}, {v(ACC+z)}, {v(WI+z)}")
    for z in range(8):
        A(f"v_fma_f32 {v(AC2+z)}, -{v(ACC+8+z)}, {v(WI+z)}, {v(AC2+z)}")
        A(f"v_fmac_f32 {v(AC2+8+z)}, {v(ACC+8+z)}, {v(WR+z)}")
    for p in range(4):
        A(f"{cvtpk(INV)} {v(BRE+p)}, {v(AC2+2*p)}, {v(AC2+2*p+1)}")
        A(f"{cvtpk(INV)} {v(BIM+p)}, -{v(AC2+8+2*p)}, -{v(AC2+8+2*p+1)}")
    dft32(INV, CM2, SM2, NM2, ACC)
    twiddle(ACC, AC2, AC2 + 8)
    for z in range(8):
        mt, r = z >> 2, z & 3
        A(f"{cvtpk(INV)} {v(WR+z)}, {v(AC2+z)}, {v(AC2+8+z)}")
        A(f"ds_write_b32 {v(AWr)}, {v(WR+z)} offset:{8192+(16*mt+r)*272}")
    A.waitcnt(lgkm=0)
    A("s_barrier")
    for t_ in range(4):
        for nt in range(2):
            A(f"ds_read_b128 {v(D+4*(2*t_+nt),4)}, {v(ARd)} offset:{8192+nt*16*272+t_*64}")
    for t_ in range(4):
        for nt in range(2):
            f = 2 * t_ + nt
            c0 = "0" if t_ == 0 else R(ACC, nt)
            c1 = "0" if t_ == 0 else R(ACC + 8, nt)
            A(f"{mfma16(INV)} {R(ACC,nt)}, {v(ERE2+4*t_,4)}, {v(D+4*f,4)}, {c0}")
            A(f"{mfma16(INV)} {R(ACC+8,nt)}, {v(EIM2+4*t_,4)}, {v(D+4*f,4)}, {c1}")
    for nt in range(2):
        o = AC2 + 4 * nt
        A(f"{cvtpk(INV)} {v(o)}, {v(ACC+4*nt)}, {v(ACC+4*nt+1)}")
        A(f"{cvtpk(INV)} {v(o+1)}, {v(ACC+4*nt+2)}, {v(ACC+4*nt+3)}")
        A(f"{cvtpk(INV)} {v(o+2)}, -{v(ACC+8+4*nt)}, -{v(ACC+8+4*nt+1)}")
        A(f"{cvtpk(INV)} {v(o+3)}, -{v(ACC+8+4*nt+2)}, -{v(ACC+8+4*nt+3)}")
    A("s_cmp_eq_u32 s42, 0")
    A("s_cbranch_scc1 LB_st_special")
    for nt in range(2):
        A(f"buffer_store_dwordx4 {v(AC2+4*nt,4)}, {v(AO)}, s[20:23], s{48+nt} offen")
    A("s_endpgm")
    A.label("LB_st_special", keep=True)
    A("s_lshr_b32 s50, s41, 5")
    A(f"v_add_u32 {v(AO)}, s50, {v(AO)}")
    for nt in range(2):
        A(f"buffer_store_dwordx2 {v(AC2+4*nt,2)}, {v(AO)}, s[20:23], s{48+nt} offen")
    A.label("LB_end", keep=True)
    A("s_endpgm")
    return A

HALF = {'bf16': 0x3f00, 'f16': 0x3800}
ONE = {'bf16': 0x3f80, 'f16': 0x3c00}
def kernel_C():
    A = Asm()
    A("s_load_dwordx2 s[4:5], s[0:1], 0")
    A("s_load_dwordx2 s[10:11], s[0:1], 64")
    A("s_cmp_ge_u32 s2, 256")
    A("s_cbranch_scc1 LC_end")
    A("v_and_b32 v1, 63, v0")
    A("v_lshrrev_b32 v4, 6, v0")
    A("v_and_b32 v2, 15, v0")
    A("v_readfirstlane_b32 s40, v4")
    A("v_lshrrev_b32 v3, 4, v1")
    A("s_lshr_b32 s41, s2, 5")
    A("s_lshl_b32 s41, s41, 3")
    A("s_and_b32 s42, s2, 7")
    A("s_add_u32 s41, s41, s42")
    A("s_lshr_b32 s42, s41, 1")
    A("s_and_b32 s43, s41, 1")
    A("s_lshl_b32 s43, s43, 2")
    A("s_lshr_b32 s44, s2, 3")
    A("s_and_b32 s44, s44, 3")
    A("s_add_u32 s43, s43, s44")
    A("s_lshl_b32 s44, s42, 8")
    A("s_lshl_b32 s45, s43, 5")
    A("s_add_u32 s44, s44, s45")
    A(f"s_add_u32 s44, s44, {OFF_X2}")
    A("v_lshrrev_b32 v5, 1, v1")
    A("v_and_b32 v5, 15, v5")
    A("v_lshrrev_b32 v6, 5, v1")
    A("s_lshl_b32 s45, s40, 2")
    A("v_add_u32 v6, s45, v6")
    A("v_and_b32 v7, 7, v5")
    A("v_lshlrev_b32 v7, 5, v7")
    A("v_and_b32 v12, 1, v1")
    A("v_lshlrev_b32 v12, 4, v12")
    A("v_cmp_gt_u32 s[46:47], 8, v5")
    for d in range(2):
        if d: A("v_add_u32 v6, 2, v6")
        A("v_sub_u32 v9, 32, v6")
        A("v_cmp_eq_u32 vcc, 0, v6")
        A("v_cndmask_b32 v9, v9, 16, vcc")
        A("v_cndmask_b32 v9, v9, v6, s[46:47]")
        A("v_add_u32 v9, v9, v7")
        A(f"v_lshl_add_u32 {v(10+d)}, v9, 13, v12")
    A("s_lshl_b32 s48, s43, 8")
    A("s_lshl_b32 s49, s40, 6")
    A("s_add_u32 s48, s48, s49")
    A("s_add_u32 s48, s48, s42")
    A("s_lshl_b32 s48, s48, 10")
    A("s_add_u32 s49, s48, 32768")
    A("v_lshlrev_b32 v13, 5, v2")
    A("v_lshl_add_u32 v13, v3, 3, v13")
    A("s_lshl_b32 s45, s40, 11")
    A.waitcnt(lgkm=0)
    srd(A, 20, 10, WS_SIZE)
    srd(A, 16, 4, 2097152)
    A("s_mov_b32 m0, s45")
    A("buffer_load_dwordx4 v10, s[20:23], s44 offen lds")
    A("s_add_u32 m0, s45, 1024")
    A("buffer_load_dwordx4 v11, s[20:23], s44 offen lds")
    XR = 16
    for b in range(2):
        for nt in range(2):
            A(f"buffer_load_dwordx2 {v(XR+4*b+2*nt,2)}, v13, s[16:19], s{48+b} offen offset:{nt*512}")
    MA = 24
    G = 56
    t0 = 64
    A(f"v_lshrrev_b32 {v(t0)}, 1, v2")
    A(f"v_cvt_f32_u32 {v(t0)}, {v(t0)}")
    A(f"v_add_f32 {v(t0+1)}, {f32hex(8.0)}, {v(t0)}")
    A(f"v_mul_f32 {v(t0+2)}, {f32hex(1/16)}, {v(t0)}")
    A(f"v_mul_f32 {v(t0+3)}, {f32hex(1/16)}, {v(t0+1)}")
    A(f"v_mul_f32 {v(t0)}, {f32hex(1/512)}, {v(t0)}")
    A(f"v_mul_f32 {v(t0+1)}, {f32hex(1/512)}, {v(t0+1)}")
    A("v_cmp_gt_u32 s[46:47], 2, v3")
    A(f"v_and_b32 {v(t0+4)}, 1, v2")
    A(f"v_cmp_eq_u32 s[50:51], 1, {v(t0+4)}")
    A(f"v_mov_b32 {v(t0+5)}, {f32hex(0.25)}")
    A(f"v_mov_b32 {v(t0+6)}, {f32hex(-0.25)}")
    A(f"v_cndmask_b32 {v(t0+5)}, {v(t0+5)}, {v(t0+6)}, s[46:47]")
    A(f"v_cndmask_b32 {v(t0+5)}, 0, {v(t0+5)}, s[50:51]")
    A(f"v_and_b32 {v(t0+6)}, 1, v3")
    A(f"v_lshlrev_b32 {v(t0+6)}, 7, {v(t0+6)}")
    for sl in range(4):
        A("s_lshl_b32 s52, s40, 2")
        if sl: A(f"s_add_u32 s52, s52, {sl}")
        A("s_sub_u32 s53, 32, s52")
        offreg = v(t0+5)
        if sl == 0:
            A("s_cmp_eq_u32 s52, 0")
            A("s_cselect_b32 s53, 16, s53")
            A("s_cselect_b32 s54, 0, 1.0")
            A(f"v_mul_f32 {v(t0+14)}, s54, {v(t0+5)}")
            offreg = v(t0+14)
        A(f"v_mov_b32 {v(t0+7)}, s53")
        A(f"v_mov_b32 {v(t0+8)}, s52")
        A(f"v_cndmask_b32 {v(t0+7)}, {v(t0+7)}, {v(t0+8)}, s[46:47]")
        A(f"v_add_u32 {v(t0+7)}, {v(t0+7)}, {v(t0+6)}")
        A(f"v_cvt_f32_u32 {v(t0+7)}, {v(t0+7)}")
        for tile in range(2):
            A(f"v_fma_f32 {v(t0+8)}, {v(t0+tile)}, {v(t0+7)}, {offreg}")
            for r in range(4):
                x = t0 + 9 + 2 * (r & 1)
                if r == 0:
                    A(f"v_cos_f32 {v(x)}, {v(t0+8)}")
                    A(f"v_sin_f32 {v(x+1)}, {v(t0+8)}")
                else:
                    A(f"v_fmamk_f32 {v(t0+13)}, {v(t0+2+tile)}, {f32hex(r)}, {v(t0+8)}")
                    A(f"v_cos_f32 {v(x)}, {v(t0+13)}")
                    A(f"v_sin_f32 {v(x+1)}, {v(t0+13)}")
                A(f"{cvtpk(INV)} {v(MA+8*sl+4*tile+r)}, {v(x)}, -{v(x+1)}")
    A("s_cmp_lg_u32 s40, 0")
    A("s_cbranch_scc1 LC_nofix")
    A("s_xor_b64 s[52:53], s[46:47], s[50:51]")
    for r in range(8):
        A(f"v_cndmask_b32 {v(MA+r)}, 0, {v(MA+r)}, s[52:53]")
    A(f"v_lshlrev_b32 {v(t0+7)}, 30, v2")
    A(f"v_and_b32 {v(t0+7)}, 0x80000000, {v(t0+7)}")
    A(f"v_or_b32 {v(t0+7)}, {hex(HALF[INV] * 0x10001)}, {v(t0+7)}")
    A(f"v_and_b32 {v(t0+8)}, 0x31, v1")
    A(f"v_cmp_eq_u32 vcc, 0, {v(t0+8)}")
    A(f"v_cndmask_b32 {v(MA)}, {v(MA)}, {v(t0+7)}, vcc")
    A(f"v_cndmask_b32 {v(MA+4)}, {v(MA+4)}, {v(t0+7)}, vcc")
    A.label("LC_nofix", keep=True)
    A(f"v_cvt_f32_u32 {v(t0)}, v2")
    A(f"v_lshlrev_b32 {v(t0+1)}, 2, v3")
    A(f"v_cvt_f32_u32 {v(t0+1)}, {v(t0+1)}")
    for nt in range(2):
        if nt == 0: A(f"v_mul_f32 {v(t0+2)}, {f32hex(1/32)}, {v(t0)}")
        else: A(f"v_add_f32 {v(t0+2)}, 0.5, {v(t0+2)}")
        A(f"v_mul_f32 {v(t0+3)}, {v(t0+1)}, {v(t0+2)}")
        for r in range(4):
            x = t0 + 9 + 2 * (r & 1)
            A(f"v_fmamk_f32 {v(t0+13)}, {v(t0+2)}, {f32hex(r)}, {v(t0+3)}")
            A(f"v_cos_f32 {v(x)}, {v(t0+13)}")
            A(f"v_sin_f32 {v(x+1)}, {v(t0+13)}")
            A(f"{cvtpk(INV)} {v(G+4*nt+r)}, {v(x)}, -{v(x+1)}")
    A(f"v_lshlrev_b32 {v(t0+7)}, 31, v2")
    A(f"v_or_b32 {v(t0+7)}, {hex(ONE[INV] * 0x10001)}, {v(t0+7)}")
    A("v_cmp_eq_u32 vcc, 0, v3")
    A(f"v_cndmask_b32 {v(G)}, {v(G)}, {v(t0+7)}, vcc")
    A(f"v_cndmask_b32 {v(G+4)}, {v(G+4)}, {v(t0+7)}, vcc")
    AT, AUW, AUR = 5, 6, 7
    A(f"v_lshlrev_b32 {v(AT)}, 7, v3")
    A(f"v_and_b32 {v(t0)}, 8, v1")
    A(f"v_lshl_add_u32 {v(AT)}, {v(t0)}, 2, {v(AT)}")
    A(f"v_and_b32 {v(t0)}, 1, v1")
    A(f"v_lshl_add_u32 {v(AT)}, {v(t0)}, 4, {v(AT)}")
    A(f"v_and_b32 {v(t0)}, 4, v1")
    A(f"v_lshl_add_u32 {v(AT)}, {v(t0)}, 1, {v(AT)}")
    A(f"v_add_u32 {v(AT)}, s45, {v(AT)}")
    A(f"v_mul_u32_u24 {v(AUW)}, 1040, v2")
    A(f"v_lshl_add_u32 {v(AUW)}, v3, 7, {v(AUW)}")
    A("s_lshl_b32 s52, s40, 4")
    A("s_xor_b32 s53, s52, 32")
    A(f"v_add_u32 {v(8)}, s53, {v(AUW)}")
    A(f"v_add_u32 {v(AUW)}, s52, {v(AUW)}")
    A(f"v_lshrrev_b32 {v(t0)}, 3, v2")
    A(f"v_lshlrev_b32 {v(t0)}, 1, {v(t0)}")
    A(f"v_xor_b32 {v(t0)}, {v(t0)}, v3")
    A(f"v_lshlrev_b32 {v(t0)}, 4, {v(t0)}")
    A(f"v_lshl_add_u32 {v(AUR)}, v2, 6, {v(t0)}")
    A("s_mul_i32 s52, s40, 2080")
    A(f"v_add_u32 {v(AUR)}, s52, {v(AUR)}")
    A("s_lshl_b32 s52, s43, 5")
    A("s_add_u32 s52, s52, s42")
    A("s_lshl_b32 s52, s52, 13")
    A("s_add_u32 s52, s52, s45")
    A(f"s_add_u32 s53, s52, {OFF_A2}")
    A(f"s_add_u32 s52, s52, {OFF_H}")
    DB = 64
    ACC = 80
    P = 112
    A.waitcnt(vm=4)
    for sl in range(4):
        for u in range(2):
            A(f"ds_read_b64_tr_b16 {v(DB+4*sl+2*u,2)}, {v(AT)} offset:{sl*512+u*64}")
    for sl in range(4):
        for tile in range(2):
            A(f"{mfma16(INV)} {v(ACC+8*sl+4*tile,4)}, {v(MA+8*sl+4*tile,4)}, {v(DB+4*sl,4)}, 0")
    for tile in range(2):
        for p in range(2):
            for sl in range(4):
                x = ACC + 8 * sl + 4 * tile + 2 * p
                A(f"{cvtpk(INV)} {v(P+8*tile+4*p+sl)}, {v(x)}, {v(x+1)}")
            A(f"ds_write_b128 {v(AUW if tile == 0 else 8)}, {v(P+8*tile+4*p,4)} offset:{8192+(8*tile+p)*64}")
    A.waitcnt(lgkm=0)
    A("s_barrier")
    for b in range(2):
        A(f"ds_read_b128 {v(DB+4*b,4)}, {v(AUR)} offset:{8192+b*1040}")
    XF = [128, 136]
    for b in range(2):
        for e in range(4):
            A(f"v_lshlrev_b32 {v(XF[b]+2*e)}, 16, {v(XR+4*b+e)}")
            A(f"v_and_b32 {v(XF[b]+2*e+1)}, 0xffff0000, {v(XR+4*b+e)}")
    for b in range(2):
        for nt in range(2):
            A(f"{mfma16(INV)} {v(ACC+8*b+4*nt,4)}, {v(DB+4*b,4)}, {v(G+4*nt,4)}, 0")
    A("s_mov_b32 s54, 0.125") if False else A(f"s_mov_b32 s54, {f32hex(0.125)}")
    for b in range(2):
        for e in range(4):
            x = ACC + 8 * b + 2 * e
            A(f"v_cvt_pk_bf16_f32 {v(x)}, {v(x)}, {v(x+1)}")
            A(f"v_and_b32 {v(x+1)}, 0xffff0000, {v(x)}")
            A(f"v_lshlrev_b32 {v(x)}, 16, {v(x)}")
            A(f"v_fma_f32 {v(x)}, {v(x)}, s54, {v(XF[b]+2*e)}")
            A(f"v_fma_f32 {v(x+1)}, {v(x+1)}, s54, {v(XF[b]+2*e+1)}")
            A(f"v_cvt_pk_bf16_f32 {v(XR+4*b+e)}, {v(x)}, {v(x+1)}")
            A(f"v_lshlrev_b32 {v(XF[b]+2*e)}, 16, {v(XR+4*b+e)}")
            A(f"v_and_b32 {v(XF[b]+2*e+1)}, 0xffff0000, {v(XR+4*b+e)}")
        for nt in range(2):
            A(f"buffer_store_dwordx2 {v(XR+4*b+2*nt,2)}, v13, s[20:23], s52 offen offset:{b*1024+nt*512}")
    OUT = [P, P + 4]
    layernorm_rows(A, XF, 80, 56, 'bf16', OUT)
    for b in range(2):
        for nt in range(2):
            A(f"buffer_store_dwordx2 {v(OUT[b]+2*nt,2)}, v13, s[20:23], s53 offen offset:{b*1024+nt*512}")
    A.label("LC_end", keep=True)
    A("s_endpgm")
    return A

LOG2E = 1.4426950408889634
def silu_pack(A, x0, x1, dst, t):
    A(f"v_cvt_pk_bf16_f32 {v(t)}, {x0}, {x1}")
    A(f"v_and_b32 {v(t+1)}, 0xffff0000, {v(t)}")
    A(f"v_lshlrev_b32 {v(t)}, 16, {v(t)}")
    A(f"v_mul_f32 {v(t+2)}, {f32hex(-LOG2E)}, {v(t)}")
    A(f"v_mul_f32 {v(t+3)}, {f32hex(-LOG2E)}, {v(t+1)}")
    A(f"v_exp_f32 {v(t+2)}, {v(t+2)}")
    A(f"v_exp_f32 {v(t+3)}, {v(t+3)}")
    A(f"v_add_f32 {v(t+2)}, 1.0, {v(t+2)}")
    A(f"v_add_f32 {v(t+3)}, 1.0, {v(t+3)}")
    A(f"v_rcp_f32 {v(t+2)}, {v(t+2)}")
    A(f"v_rcp_f32 {v(t+3)}, {v(t+3)}")
    A(f"v_mul_f32 {v(t)}, {v(t)}, {v(t+2)}")
    A(f"v_mul_f32 {v(t+1)}, {v(t+1)}, {v(t+3)}")
    A(f"v_cvt_pk_bf16_f32 {v(dst)}, {v(t)}, {v(t+1)}")

def kernel_D():
    A = Asm()
    A("s_load_dwordx2 s[10:11], s[0:1], 64")
    A("s_cmp_ge_u32 s2, 256")
    A("s_cbranch_scc1 LD_end")
    A("v_and_b32 v1, 63, v0")
    A("v_lshrrev_b32 v4, 6, v0")
    A("v_and_b32 v2, 15, v0")
    A("v_readfirstlane_b32 s40, v4")
    A("v_lshrrev_b32 v3, 4, v1")
    A("s_and_b32 s41, s2, 7")
    A("s_lshr_b32 s42, s2, 3")
    A("s_lshr_b32 s43, s41, 1")
    A("s_lshl_b32 s43, s43, 2")
    A("s_lshr_b32 s44, s42, 3")
    A("s_add_u32 s43, s43, s44")
    A("s_and_b32 s44, s41, 1")
    A("s_lshl_b32 s44, s44, 3")
    A("s_and_b32 s45, s42, 7")
    A("s_add_u32 s44, s44, s45")
    A("s_lshl_b32 s45, s43, 17")
    A("s_lshl_b32 s46, s40, 15")
    A("s_add_u32 s45, s45, s46")
    A(f"s_add_u32 s45, s45, {OFF_A2}")
    A("s_add_u32 s46, s45, 16384")
    A("v_lshlrev_b32 v5, 10, v2")
    A("v_lshl_add_u32 v5, v3, 4, v5")
    A("v_lshlrev_b32 v6, 4, v1")
    A("s_mul_i32 s47, s44, 114688")
    A("s_mul_i32 s48, s40, 7168")
    A("s_add_u32 s47, s47, s48")
    A(f"s_add_u32 s47, s47, {OFF_W1P}")
    A.waitcnt(lgkm=0)
    srd(A, 20, 10, WS_SIZE)
    AF = 8
    WB = 136
    ACC = 192
    T = 248
    for g in range(4):
        for half in range(2):
            A(f"s_add_u32 m0, s48, {g*28672+half*4096}")
            A(f"s_add_u32 s49, s47, {g*28672+half*4096}")
            for c in range(4 if half == 0 else 3):
                A(f"buffer_load_dwordx4 v6, s[20:23], s49 offen offset:{c*1024} lds")
        for tt in range(4):
            t_ = 4 * g + tt
            for nb in range(2):
                A(f"buffer_load_dwordx4 {v(AF+8*t_+4*nb,4)}, v5, s[20:23], s{45+nb} offen offset:{t_*64}")
    A("s_lshl_b32 s50, s43, 3")
    A("s_lshl_b32 s51, s40, 1")
    A("s_add_u32 s50, s50, s51")
    A("s_mul_i32 s50, s50, 57344")
    A("s_lshr_b32 s51, s44, 1")
    A("s_mul_i32 s51, s51, 7168")
    A("s_add_u32 s50, s50, s51")
    A(f"s_add_u32 s50, s50, {OFF_HP}")
    A("s_and_b32 s51, s44, 1")
    A("s_mul_i32 s52, s51, 3072")
    A("s_add_u32 s52, s52, s50")
    A("s_lshl_b32 s51, s51, 9")
    A("s_add_u32 s51, s51, s50")
    A("s_add_u32 s51, s51, 6144")
    A("s_add_u32 s53, s52, 57344")
    A("s_add_u32 s54, s51, 57344")
    A("v_lshlrev_b32 v7, 3, v1")
    def rd(t_):
        for ft in range(7):
            c = t_ * 7 + ft
            off = c * 1024
            A(f"ds_read_b128 {v(WB+28*(t_&1)+4*ft,4)}, {v(6 if off < 65536 else 4)} offset:{off % 65536}")
    A("v_add_u32 v4, 0x10000, v6")
    for g in range(4):
        A.waitcnt(vm=15 * (3 - g) + 8)
        A("s_barrier")
        rd(4 * g)
        for tt in range(4):
            t_ = 4 * g + tt
            if tt < 3: rd(t_ + 1)
            for ft in range(7):
                for nb in range(2):
                    acc = v(ACC + 28 * nb + 4 * ft, 4)
                    A(f"{mfma16('bf16')} {acc}, {v(WB+28*(t_&1)+4*ft,4)}, {v(AF+8*t_+4*nb,4)}, {'0' if t_ == 0 else acc}")
    for nb in range(2):
        for p in range(3):
            o = AF + 16 * nb + 4 * p
            for hh in range(2):
                x = ACC + 28 * nb + 4 * (2 * p + hh)
                silu_pack(A, v(x), v(x + 1), o + 2 * hh, T)
                silu_pack(A, v(x + 2), v(x + 3), o + 2 * hh + 1, T + 4)
            A(f"buffer_store_dwordx4 {v(o,4)}, v6, s[20:23], s{52+nb} offen offset:{p*1024}")
        o = AF + 16 * nb + 12
        x = ACC + 28 * nb + 24
        silu_pack(A, v(x), v(x + 1), o, T)
        silu_pack(A, v(x + 2), v(x + 3), o + 1, T + 4)
        A(f"buffer_store_dwordx2 {v(o,2)}, v7, s[20:23], s{51 if nb == 0 else 54} offen")
    A.label("LD_end", keep=True)
    A("s_endpgm")
    return A

def kernel_E():
    A = Asm()
    A("s_load_dwordx2 s[4:5], s[0:1], 48")
    A("s_load_dwordx2 s[10:11], s[0:1], 64")
    A("s_cmp_ge_u32 s2, 256")
    A("s_cbranch_scc1 LE_end")
    A("v_and_b32 v1, 63, v0")
    A("v_lshrrev_b32 v4, 6, v0")
    A("v_and_b32 v2, 15, v0")
    A("v_readfirstlane_b32 s40, v4")
    A("v_lshrrev_b32 v3, 4, v1")
    A("s_and_b32 s41, s2, 7")
    A("s_lshr_b32 s42, s2, 3")
    A("s_lshl_b32 s41, s41, 2")
    A("s_lshr_b32 s43, s42, 3")
    A("s_add_u32 s41, s41, s43")
    A("s_and_b32 s42, s42, 7")
    A("s_mul_i32 s43, s40, 14")
    A("s_mul_i32 s44, s42, 56")
    A("s_add_u32 s44, s44, s43")
    A("s_lshl_b32 s44, s44, 12")
    A(f"s_add_u32 s44, s44, {OFF_W2P}")
    A("s_mul_i32 s45, s41, 224")
    A("s_add_u32 s45, s45, s43")
    A("s_lshl_b32 s45, s45, 10")
    A(f"s_add_u32 s45, s45, {OFF_HP}")
    A("v_lshlrev_b32 v4, 4, v1")
    for nb in range(1, 4):
        A(f"v_add_u32 {v(4+nb)}, {nb*57344}, v4")
    A("v_lshlrev_b32 v8, 3, v1")
    for nb in range(1, 4):
        A(f"v_add_u32 {v(8+nb)}, {nb*57344}, v8")
    A.waitcnt(lgkm=0)
    srd(A, 20, 10, WS_SIZE)
    srd(A, 16, 4, 2097152)
    NS = 7
    RING = 24
    def issue(s_):
        b = RING + 32 * (s_ % NS)
        for dt in range(4):
            A(f"buffer_load_dwordx4 {v(b+4*dt,4)}, v4, s[20:23], s44 offen offset:{dt*1024}")
        for nb in range(4):
            if s_ % 7 == 6:
                A(f"buffer_load_dwordx2 {v(b+16+4*nb,2)}, {v(8+nb)}, s[20:23], s45 offen")
                A(f"buffer_load_dwordx2 {v(b+16+4*nb+2,2)}, {v(8+nb)}, s[20:23], s45 offen offset:512")
            else:
                A(f"buffer_load_dwordx4 {v(b+16+4*nb,4)}, {v(4+nb)}, s[20:23], s45 offen")
        A("s_add_u32 s44, s44, 4096")
        A("s_add_u32 s45, s45, 1024")
    for s_ in range(NS): issue(s_)
    A("v_lshrrev_b32 v12, 3, v0")
    A("v_and_b32 v13, 7, v0")
    A("v_lshlrev_b32 v14, 10, v12")
    A("v_lshl_add_u32 v14, v13, 4, v14")
    A("s_lshl_b32 s46, s41, 16")
    A("s_lshl_b32 s47, s42, 7")
    A("s_add_u32 s46, s46, s47")
    A(f"s_add_u32 s46, s46, {OFF_H}")
    A("s_add_u32 s48, s46, 32768")
    A("v_and_b32 v15, 7, v12")
    A("v_lshlrev_b32 v15, 15, v15")
    A("v_lshrrev_b32 v16, 3, v12")
    A("v_lshl_add_u32 v15, v16, 10, v15")
    A("v_lshl_add_u32 v15, v13, 4, v15")
    A("s_lshr_b32 s49, s41, 2")
    A("s_lshl_b32 s49, s49, 18")
    A("s_and_b32 s50, s41, 3")
    A("s_lshl_b32 s50, s50, 13")
    A("s_add_u32 s49, s49, s50")
    A("s_add_u32 s49, s49, s47")
    A("s_add_u32 s50, s49, 4096")
    A("v_mul_u32_u24 v17, 272, v2")
    A("v_lshl_add_u32 v17, v3, 4, v17")
    A("s_mul_i32 s51, s40, 17408")
    A("v_add_u32 v17, s51, v17")
    A("v_mul_u32_u24 v18, 272, v12")
    A("v_lshl_add_u32 v18, v13, 5, v18")
    for s_ in range(14):
        b = RING + 32 * (s_ % NS)
        for dt in range(4):
            for nb in range(4):
                acc = a(16 * nb + 4 * dt, 4)
                A(f"{mfma16('bf16')} {acc}, {v(b+4*dt,4)}, {v(b+16+4*nb,4)}, {'0' if s_ == 0 else acc}")
        if s_ + NS < 14: issue(s_ + NS)
        if s_ == 7:
            A("buffer_load_dwordx4 v[248:251], v14, s[20:23], s46 offen")
            A("buffer_load_dwordx4 v[252:255], v14, s[20:23], s48 offen")
    for nb in range(4):
        for dt in range(4):
            A(f"ds_write_b128 v17, {a(16*nb+4*dt,4)} offset:{nb*16*272+dt*64}")
    A.waitcnt(lgkm=0)
    A("s_barrier")
    R = RING
    for ps in range(2):
        for w in range(4):
            for hh in range(2):
                A(f"ds_read_b128 {v(R+32*ps+8*w+4*hh,4)}, v18 offset:{w*17408+ps*32*272+hh*16}")
    for ps in range(2):
        x = R + 32 * ps
        hreg = 248 + 4 * ps
        for e in range(8):
            A(f"v_add_f32 {v(x+e)}, {v(x+e)}, {v(x+8+e)}")
            A(f"v_add_f32 {v(x+16+e)}, {v(x+16+e)}, {v(x+24+e)}")
        for e in range(8):
            A(f"v_add_f32 {v(x+e)}, {v(x+e)}, {v(x+16+e)}")
        for e in range(4):
            A(f"v_cvt_pk_bf16_f32 {v(x+8)}, {v(x+2*e)}, {v(x+2*e+1)}")
            A(f"v_lshlrev_b32 {v(x+9)}, 16, {v(x+8)}")
            A(f"v_and_b32 {v(x+8)}, 0xffff0000, {v(x+8)}")
            A(f"v_lshlrev_b32 {v(x+10)}, 16, {v(hreg+e)}")
            A(f"v_and_b32 {v(x+11)}, 0xffff0000, {v(hreg+e)}")
            A(f"v_add_f32 {v(x+9)}, {v(x+9)}, {v(x+10)}")
            A(f"v_add_f32 {v(x+8)}, {v(x+8)}, {v(x+11)}")
            A(f"v_cvt_pk_bf16_f32 {v(x+16+e)}, {v(x+9)}, {v(x+8)}")
        A(f"buffer_store_dwordx4 {v(x+16,4)}, v15, s[16:19], s{49+ps} offen")
    A.label("LE_end", keep=True)
    A("s_endpgm")
    return A

def build(kernels, fn):
    hdr = "".join(f"; @launch kernel={n} grid=({g},1,1) block=({b},1,1) lds={l}\n" for (n, g, b, l, _) in kernels)
    body = '.amdgcn_target "amdgcn-amd-amdhsa--gfx950"\n'
    seen = set()
    for (n, g, b, l, A) in kernels:
        if n in seen: continue
        seen.add(n)
        body += kernel_text(n, A)
    open(fn, "w").write(hdr + body)

if __name__ == "__main__":
    ks = [("ka_kernel", NA_ROW + NA_WT + NA_PK, 512, 65536, kernel_A()),
          ("kb_kernel", NB_COL, 256, 16896, kernel_B()),
          ("kc_kernel", 256, 256, 8192 + 16640, kernel_C()),
          ("kd_kernel", 256, 256, 114688, kernel_D()),
          ("ke_kernel", 256, 256, 69632, kernel_E())]
    build(ks, sys.argv[1] if len(sys.argv) > 1 else "k.s")
```
